```python
import torch

def _softmax(x, axis=-1):
    return torch.softmax(x, dim=axis)
def _gelu(x):
    return torch.nn.functional.gelu(x, approximate="tanh")
def _silu(x):
    return torch.nn.functional.silu(x)
def _sigmoid(x):
    return torch.sigmoid(x)
def _layernorm(x, axis=-1, eps=1e-5):
    m = x.mean(dim=axis, keepdim=True)
    v = x.var(dim=axis, keepdim=True, unbiased=False)
    return (x - m) / torch.sqrt(v + eps)
def _scatter_add(tgt, idx, src, axis=0):
    return tgt.clone().index_add_(axis, idx, src)
def _segment_sum(src, seg, n):
    out = torch.zeros((n,) + src.shape[1:], dtype=src.dtype)
    return out.index_add_(0, seg, src)
def _pad(x, pw):
    flat = tuple(v for pair in reversed(pw) for v in pair)
    return torch.nn.functional.pad(x, flat)

kernel_name = 'interleave_layers__linear_kernel_hedgehog__grouped_kv_mqa__prompt'

def setup_inputs():

    _w = (lambda a: (lambda t: t.to(torch.bfloat16) if t.is_floating_point() else t)(torch.as_tensor(a)))
    def _A_setup():
        B, S, D, H = 1, 2048, 1024, 32
        Dh = D // H
        return {
            "x": _w((lambda *s: torch.randn(*s, dtype=torch.bfloat16) * 0.05)(B, S, D)),
            "wqkv": _w((lambda *s: torch.randn(*s, dtype=torch.bfloat16) * 0.2)(D, 3 * D)),
            "w_phi": _w((lambda *s: torch.randn(*s, dtype=torch.bfloat16) * 0.2)(H, Dh, Dh) * (Dh ** -0.5)),
            "wo": _w((lambda *s: torch.randn(*s, dtype=torch.bfloat16) * 0.05)(D, D)),
        }
    _A_in = _A_setup()

    def _B_setup():
        B, S, D, H = 1, 2048, 1024, 32
        Dh = D // H
        return {
            "x": _w((lambda *s: torch.randn(*s, dtype=torch.bfloat16) * 0.05)(B, S, D)),
            "wq": _w((lambda *s: torch.randn(*s, dtype=torch.bfloat16) * 0.1)(D, H * Dh)),
            "wk": _w((lambda *s: torch.randn(*s, dtype=torch.bfloat16) * 0.1)(D, Dh)),
            "wv": _w((lambda *s: torch.randn(*s, dtype=torch.bfloat16) * 0.05)(D, Dh)),
            "wo": _w((lambda *s: torch.randn(*s, dtype=torch.bfloat16) * 0.05)(H * Dh, D)),
        }
    _B_in = _B_setup()

    return {
        "A_x": _A_in["x"],
        "A_wqkv": _A_in["wqkv"],
        "A_w_phi": _A_in["w_phi"],
        "A_wo": _A_in["wo"],
        "B_x": _B_in["x"],
        "B_wq": _B_in["wq"],
        "B_wk": _B_in["wk"],
        "B_wv": _B_in["wv"],
        "B_wo": _B_in["wo"],
    }

def reference(A_x, A_wqkv, A_w_phi, A_wo, B_x, B_wq, B_wk, B_wv, B_wo):
    def _A_ref(x, wqkv, w_phi, wo):
        B, S, D = x.shape
        H = 32; Dh = D // H
        qkv = (lambda x, *d: x.permute(*d))((x @ wqkv).reshape(B, S, 3, H, Dh), 2, 0, 3, 1, 4)
        q, k, v = qkv[0], qkv[1], qkv[2]
        pq = torch.einsum("bhsd,hdf->bhsf", q, w_phi)
        pk = torch.einsum("bhsd,hdf->bhsf", k, w_phi)
        phi_q = torch.concatenate([_softmax(pq, axis=-1), _softmax(-pq, axis=-1)], axis=-1)
        phi_k = torch.concatenate([_softmax(pk, axis=-1), _softmax(-pk, axis=-1)], axis=-1)
        kv = torch.einsum("bhsf,bhsd->bhfd", phi_k, v)
        z  = torch.einsum("bhsf->bhf", phi_k)
        num = torch.einsum("bhqf,bhfd->bhqd", phi_q, kv)
        den = torch.einsum("bhqf,bhf->bhq", phi_q, z)[..., None] + 1e-6
        o = num / den
        return (lambda x, *d: x.permute(*d))(o, 0, 2, 1, 3).reshape(B, S, D) @ wo

    def _B_ref(x, wq, wk, wv, wo):
        B, S, D = x.shape
        H = 32
        Dh = D // H
        q = (lambda x, *d: x.permute(*d))((x @ wq).reshape(B, S, H, Dh), 0, 2, 1, 3)
        k = x @ wk
        v = x @ wv
        scores = torch.einsum("bhqd,bkd->bhqk", q, k) * (Dh ** -0.5)
        p = _softmax(scores, axis=-1)
        o = torch.einsum("bhqk,bkd->bhqd", p, v)
        return (lambda x, *d: x.permute(*d))(o, 0, 2, 1, 3).reshape(B, S, H * Dh) @ wo

    x = A_x
    x = x + _A_ref(_layernorm(x, axis=-1), A_wqkv, A_w_phi, A_wo)
    x = x + _B_ref(_layernorm(x, axis=-1), B_wq, B_wk, B_wv, B_wo)
    x = x + _A_ref(_layernorm(x, axis=-1), A_wqkv, A_w_phi, A_wo)
    x = x + _B_ref(_layernorm(x, axis=-1), B_wq, B_wk, B_wv, B_wo)
    return x
```

```python
import re

REG_RE = re.compile(r'^(-|\|)?(abs\()?(-)?([vas])(\d+|\[(\d+):(\d+)\])\)?\|?$')

def parse_reg(tok):
    t = tok.strip()
    if t in ('vcc',): return [('s', 106), ('s', 107)]
    if t == 'vcc_lo': return [('s', 106)]
    if t == 'vcc_hi': return [('s', 107)]
    if t == 'exec': return [('s', 126), ('s', 127)]
    if t == 'm0': return [('s', 124)]
    m = REG_RE.match(t)
    if not m: return []
    f = m.group(4)
    if m.group(6) is not None:
        return [(f, i) for i in range(int(m.group(6)), int(m.group(7)) + 1)]
    return [(f, int(m.group(5)))]

TRANS = ('v_exp_f32', 'v_log_f32', 'v_rcp_f32', 'v_rsq_f32', 'v_sqrt_f32', 'v_sin_f32', 'v_cos_f32', 'v_exp_f16', 'v_rcp_iflag_f32')

class Ins:
    __slots__ = ('text', 'mn', 'cls', 'wr', 'rd', 'passes', 'srcc', 'srcab', 'states', 'wide_store_data', 'ldsdma', 'dst')
    def __init__(self, text):
        self.text = text
        body = text.split(';')[0].strip()
        parts = body.split(None, 1)
        mn = parts[0]
        self.mn = mn
        ops = []
        if len(parts) > 1:
            cur = ''; depth = 0
            for ch in parts[1]:
                if ch == '[': depth += 1
                if ch == ']': depth -= 1
                if ch == ',' and depth == 0:
                    ops.append(cur.strip()); cur = ''
                else:
                    cur += ch
            ops.append(cur.strip())
        mods = ''
        if ops:
            sp = ops[-1].split(None, 1)
            if len(sp) > 1:
                ops[-1] = sp[0]; mods = sp[1]
        R = [parse_reg(o) for o in ops]
        self.wr = set(); self.rd = set(); self.passes = 0; self.srcc = set(); self.srcab = set()
        self.states = 1; self.wide_store_data = set(); self.ldsdma = False; self.dst = ()
        base = re.sub(r'_(e32|e64|sdwa|dpp)$', '', mn)
        if mn == 's_nop':
            self.cls = 'nop'; self.states = int(ops[0], 0) + 1
        elif mn.startswith('v_mfma') or mn.startswith('v_smfmac'):
            self.cls = 'mfma'
            self.passes = 8 if '32x32' in mn else (2 if '4x4x4' in mn else 4)
            self.wr = set(R[0]); self.dst = tuple(R[0])
            self.srcab = set(R[1]) | set(R[2])
            if mn.startswith('v_smfmac'):
                self.srcc = set(R[0]); self.srcab |= set(R[3])
            else:
                self.srcc = set(R[3])
            self.rd = self.srcab | self.srcc
        elif mn.startswith('v_'):
            if base in TRANS: self.cls = 'trans'
            elif base.startswith('v_dot'): self.cls = 'dot'
            else: self.cls = 'valu'
            if base.startswith('v_permlane') and 'swap' in base:
                self.wr = set(R[0]) | set(R[1]); self.rd = set(R[0]) | set(R[1])
            elif base.startswith('v_cmp'):
                self.wr = set(R[0])
                for r in R[1:]: self.rd |= set(r)
            elif base in ('v_add_co_u32', 'v_sub_co_u32', 'v_addc_co_u32', 'v_subb_co_u32'):
                self.wr = set(R[0]) | set(R[1])
                for r in R[2:]: self.rd |= set(r)
            else:
                self.wr = set(R[0])
                for r in R[1:]: self.rd |= set(r)
                if base.startswith('v_fmac') or base.startswith('v_dot2c') or base.startswith('v_pk_fmac') or 'UNUSED_PRESERVE' in mods or base == 'v_writelane_b32':
                    self.rd |= set(R[0])
                if base == 'v_cndmask_b32' and len(ops) == 3:
                    self.rd |= {('s', 106), ('s', 107)}
            if 'dpp' in mn or 'row_' in mods or 'quad_perm' in mods:
                self.cls = 'dpp'
        elif mn.startswith('buffer_') or mn.startswith('global_') or mn.startswith('flat_'):
            self.cls = 'vmem'
            is_lds = re.search(r'(^|\s)lds(\s|$)', mods) is not None or '_lds_' in mn
            if mn.startswith('buffer_wbl2') or mn.startswith('buffer_inv'):
                pass
            elif 'store' in mn or ('atomic' in mn and 'sc0' not in mods):
                for r in R: self.rd |= set(r)
                if 'x4' in mn or 'x3' in mn:
                    self.wide_store_data = set(R[0]) if mn.startswith('buffer_') else set(R[1])
            elif is_lds:
                self.ldsdma = True
                for r in R: self.rd |= set(r)
                self.rd.add(('s', 124))
            else:
                self.wr = set(R[0])
                for r in R[1:]: self.rd |= set(r)
                if 'atomic' in mn: self.rd |= set(R[0])
        elif mn.startswith('ds_'):
            self.cls = 'ds'
            if 'write' in mn or mn.startswith('ds_add') or mn.startswith('ds_max'):
                for r in R: self.rd |= set(r)
            else:
                self.wr = set(R[0])
                for r in R[1:]: self.rd |= set(r)
        elif mn.startswith('s_'):
            self.cls = 'salu'
            if mn.startswith('s_cmp') or mn.startswith('s_cbranch') or mn in ('s_branch', 's_barrier', 's_waitcnt', 's_endpgm', 's_setprio', 's_sleep', 's_bitcmp1_b32', 's_bitcmp0_b32'):
                for r in R: self.rd |= set(r)
            else:
                if R: self.wr = set(R[0])
                for r in R[1:]: self.rd |= set(r)
                if 'saveexec' in mn: self.wr |= {('s', 126), ('s', 127)}
        else:
            raise ValueError('unknown instruction: ' + text)

VALU_LIKE = ('valu', 'trans', 'dot', 'dpp')

def required(p, c):
    need = 0
    pw_v = {r for r in p.wr if r[0] in 'va'}
    pw_s = {r for r in p.wr if r[0] == 's'}
    if p.cls in VALU_LIKE:
        if c.cls == 'mfma' and (pw_v & c.rd): need = max(need, 3 if p.cls == 'dot' else 2)
        if p.cls == 'trans' and c.cls != 'trans' and (pw_v & (c.rd | c.wr)): need = max(need, 1)
        if c.mn.startswith('v_permlane') and (pw_v & c.rd): need = max(need, 2)
        if c.cls == 'dpp' and (pw_v & c.rd): need = max(need, 2)
        if (c.mn.startswith('v_readfirstlane') or c.mn.startswith('v_readlane')) and (pw_v & c.rd): need = max(need, 1)
        if pw_s:
            if c.cls in VALU_LIKE and (pw_s & c.rd): need = max(need, 4 if ('lane' in c.mn) else 2)
            if c.cls == 'vmem' and (pw_s & c.rd): need = max(need, 5)
            if c.cls == 'salu' and (pw_s & c.rd): need = max(need, 1)
            if ('s', 126) in pw_s and c.cls == 'mfma': need = max(need, 4)
        if p.cls == 'dot':
            if c.mn == p.mn:
                pass
            elif (pw_v & (c.rd | c.wr)): need = max(need, 3)
        if 'sdwa' in p.mn and c.cls in VALU_LIKE and (pw_v & (c.rd | c.wr)): need = max(need, 1)
    if p.cls == 'mfma':
        n = p.passes
        tab_c = {2: 4, 4: 6, 8: 10, 16: 18}[n]
        tab_ab = {2: 5, 4: 8, 8: 12, 16: 20}[n]
        if c.cls == 'mfma':
            if p.wr & c.srcc:
                if c.srcc == p.wr and c.passes == p.passes:
                    need = max(need, 2 if n == 2 else 0)
                else:
                    need = max(need, tab_c)
            if p.wr & c.srcab: need = max(need, tab_ab)
            if (p.wr & c.wr) and not (p.wr & c.srcc):
                need = max(need, tab_c)
        elif c.cls in VALU_LIKE or c.cls in ('vmem', 'ds'):
            if p.wr & (c.rd | c.wr): need = max(need, tab_ab)
        if c.cls in VALU_LIKE and (p.srcc & c.wr):
            need = max(need, {2: 1, 4: 3, 8: 7, 16: 15}[n])
    if p.cls == 'salu' and ('s', 124) in p.wr and c.ldsdma: need = max(need, 1)
    if p.wide_store_data and (p.wide_store_data & c.wr):
        need = max(need, 2 if c.cls in VALU_LIKE else 1)
    return need

class Asm:
    def __init__(self):
        self.lines = []
        self.hist = []
        self.nops_inserted = 0
    def raw(self, text):
        self.lines.append(text)
    def comment(self, text):
        self.lines.append('    ; ' + text)
    def _pad_for(self, ins, hist):
        dist = 0; need = 0
        for p in reversed(hist):
            if dist >= 24: break
            r = required(p, ins)
            if r > dist: need = max(need, r - dist)
            dist += p.states
        return need
    def e(self, text):
        for line in text.strip().split('\n'):
            line = line.strip()
            if not line or line.startswith(';'):
                if line: self.lines.append('    ' + line)
                continue
            ins = Ins(line)
            need = self._pad_for(ins, self.hist)
            while need > 0:
                k = min(need, 16)
                nop = Ins(f's_nop {k-1}')
                self.lines.append(f'    s_nop {k-1}')
                self.hist.append(nop)
                self.nops_inserted += 1
                need -= k
            self.lines.append('    ' + line)
            self.hist.append(ins)
            if len(self.hist) > 64: self.hist = self.hist[-40:]
    def label(self, name, keep_hist=True):
        self.lines.append(name + ':')
        return len(self.lines)
    def loop_begin(self, name):
        self.lines.append(name + ':')
        return len(self.lines)
    def loop_end(self, begin_idx, branch_text):
        head = []
        for l in self.lines[begin_idx:]:
            t = l.strip()
            if not t or t.startswith(';') or t.endswith(':') or t.startswith('.'): continue
            head.append(Ins(t))
            if len(head) >= 26: break
        br = Ins(branch_text)
        for pad in range(0, 24):
            h = list(self.hist)
            if pad: h.append(Ins(f's_nop {min(pad,16)-1}'))
            if pad > 16: h.append(Ins(f's_nop {pad-16-1}'))
            h.append(br)
            ok = True
            for ins in head:
                if self._pad_for(ins, h) > 0: ok = False; break
                h.append(ins)
            if ok: break
        else:
            raise RuntimeError('cannot pad loop')
        if pad:
            self.lines.append(f'    s_nop {min(pad,16)-1}')
            self.hist.append(Ins(f's_nop {min(pad,16)-1}'))
            if pad > 16:
                self.lines.append(f'    s_nop {pad-16-1}')
                self.hist.append(Ins(f's_nop {pad-16-1}'))
        self.e(branch_text)
    def flush_hazards(self, n=20):
        self.e('s_nop 15'); self.e('s_nop 3')
    def text(self):
        return '\n'.join(self.lines) + '\n'

def vr(base, n=1, f='v'):
    return f'{f}{base}' if n == 1 else f'{f}[{base}:{base+n-1}]'
def ar(base, n=1): return vr(base, n, 'a')
def sr(base, n=1): return vr(base, n, 's')
```

```python
import sys
from asmlib import Asm, vr, ar, sr

NAME = "interleave_layers__linear_kernel_hedgehog__grouped_kv_mqa__prompt"
MB = 1 << 20
WS_X = [0 * MB, 4 * MB, 8 * MB, 12 * MB]
WS_O = [16 * MB, 20 * MB, 24 * MB, 28 * MB]
WS_Q = [32 * MB, 36 * MB]
WS_KV = [40 * MB, 40 * MB + 256 * 1024]
WS_KVP = [41 * MB, 46 * MB]
WS_ZP = [45 * MB, 50 * MB]
WS_SIZE = 268435456
KA = dict(A_x=0, A_wqkv=8, A_w_phi=16, A_wo=24, B_x=32, B_wq=40, B_wk=48, B_wv=56, B_wo=64, out=72, dbg=80, ws=88)
LOG2E = 1.4426950408889634

import struct
def f32hex(x): return '0x%08x' % struct.unpack('<I', struct.pack('<f', x))[0]

class Kernel:
    def __init__(self, name, vgpr, agpr, sgpr, lds, grid=256, block=256):
        self.name = name; self.vgpr = vgpr; self.agpr = agpr; self.sgpr = sgpr; self.lds = lds; self.grid = grid; self.block = block
    def desc(self):
        acc = (self.vgpr + 3) // 4 * 4
        nfv = acc + self.agpr if self.agpr else self.vgpr
        return f""".p2align 6
.amdhsa_kernel {self.name}
  .amdhsa_next_free_vgpr {nfv}
  .amdhsa_next_free_sgpr {self.sgpr}
  .amdhsa_accum_offset {acc}
  .amdhsa_group_segment_fixed_size 0
  .amdhsa_kernarg_size 96
  .amdhsa_user_sgpr_count 2
  .amdhsa_user_sgpr_kernarg_segment_ptr 1
  .amdhsa_system_sgpr_workgroup_id_x 1
.end_amdhsa_kernel
"""

def entry(a, name):
    a.raw(f'.globl {name}\n.p2align 8\n.type {name},@function\n{name}:')
    a.hist = []

def srd(a, s, ptr_lo, off, size, bias=0):
    if isinstance(off, int):
        o = off - bias
        if o >= 0:
            a.e(f's_add_u32 s{s}, s{ptr_lo}, {o}')
            a.e(f's_addc_u32 s{s+1}, s{ptr_lo+1}, 0')
        else:
            a.e(f's_sub_u32 s{s}, s{ptr_lo}, {-o}')
            a.e(f's_subb_u32 s{s+1}, s{ptr_lo+1}, 0')
    else:
        assert bias == 0
        a.e(f's_add_u32 s{s}, s{ptr_lo}, {off}')
        a.e(f's_addc_u32 s{s+1}, s{ptr_lo+1}, 0')
    a.e(f's_mov_b32 s{s+2}, {size + bias}')
    a.e(f's_mov_b32 s{s+3}, 0x00020000')

def gen_prep(a):
    k = Kernel('prep_kernel', 32, 0, 32, 0)
    entry(a, k.name)
    a.e(f"""
    s_cmp_ge_u32 s2, 256
    s_cbranch_scc1 L_prep_end
    s_load_dwordx2 s[4:5], s[0:1], {KA['A_x']}
    s_load_dwordx2 s[6:7], s[0:1], {KA['ws']}
    v_lshrrev_b32 v1, 6, v0
    v_and_b32 v2, 63, v0
    v_readfirstlane_b32 s3, v1
    s_waitcnt lgkmcnt(0)
    """)
    srd(a, 8, 4, 0, 4 * MB)
    srd(a, 12, 6, WS_X[0], 4 * MB)
    a.e(f"""
    s_lshr_b32 s16, s2, 2          ; tb
    s_and_b32 s17, s2, 3
    s_lshl_b32 s17, s17, 4
    s_lshl_b32 s18, s3, 2
    s_add_u32 s17, s17, s18        ; ks0
    v_and_b32 v3, 31, v2           ; t
    v_lshrrev_b32 v4, 5, v2        ; h
    v_lshlrev_b32 v3, 11, v3       ; t*2048
    v_lshl_add_u32 v3, v4, 4, v3   ; + h*16
    s_lshl_b32 s19, s16, 16        ; tb*32*2048
    s_lshl_b32 s20, s17, 5
    s_add_u32 s19, s19, s20
    """)
    for i in range(4):
        a.e(f'buffer_load_dwordx4 v[{8+4*i}:{11+4*i}], v3, s[8:11], s19 offen offset:{32*i}')
    a.e(f"""
    s_lshl_b32 s21, s16, 16        ; tb*64*1024
    s_lshl_b32 s22, s17, 10
    s_add_u32 s21, s21, s22
    v_lshlrev_b32 v5, 4, v2
    """)
    for i in range(4):
        b = 8 + 4 * i
        a.e('s_waitcnt vmcnt(3)')
        a.e(f'v_permlane32_swap_b32 v{b}, v{b+2}')
        a.e(f'v_permlane32_swap_b32 v{b+1}, v{b+3}')
        a.e(f'buffer_store_dwordx4 v[{b}:{b+3}], v5, s[12:15], s21 offen offset:{1024*i}')
    a.raw('L_prep_end:')
    a.e('s_endpgm')
    return k

V_LANE = 1
V_XOFF = 2
V_DOFF = 6
V_TRA = 10
V_SUM, V_SQ = 22, 23
V_CS = 24
V_T = 28
V_ACC = 32
V_WF = 96
V_XR = 128
S_WAVE = 3
S_X, S_W, S_W2, S_M1, S_M2, S_M3 = 4, 8, 12, 16, 20, 24
S_R, S_G = 28, 29
S_XO, S_WO, S_WO2, S_M0B, S_CNT, S_ONES = 30, 31, 32, 33, 34, 35
S_WS, S_P1, S_P2, S_P3 = 36, 38, 40, 42
S_A0 = 44
S_T = 52
WBIAS = 4096

def wg_map(a):
    a.e(f"""
    v_lshrrev_b32 v{V_T}, 6, v0
    v_and_b32 v{V_LANE}, 63, v0
    v_readfirstlane_b32 s{S_WAVE}, v{V_T}
    s_and_b32 s{S_T}, s2, 7
    s_lshr_b32 s{S_T+1}, s2, 3
    s_lshl_b32 s{S_R}, s{S_T}, 1
    s_lshr_b32 s{S_T+2}, s{S_T+1}, 4
    s_add_u32 s{S_R}, s{S_R}, s{S_T+2}
    s_and_b32 s{S_G}, s{S_T+1}, 15
    """)

class G:
    def __init__(self, tag, groups, orient, stats, U):
        self.tag = tag; self.groups = groups; self.orient = orient; self.stats = stats; self.U = U
        self.nextra = 0; self.extra_issue = None; self.extra_consume = None
        self.NB = len(orient)
        assert sum(2 if g[0] == 'pair' else 1 for g in groups) == self.NB
        self.ksz = self.NB * 1024
        self.slot = 4 * self.ksz
        self.lds = self.U * self.slot
        self.nbinfo = []
        o = 0
        for g in groups:
            if g[0] == 'pair':
                self.nbinfo += [(o, 512, 0), (o + 256, 512, 0)]; o += 2048
            else:
                self.nbinfo += [(o, 256, 1)]; o += 1024
        self.nwin = (self.lds + 65535) // 65536
        self.npat = 2 if any(g[0] == 'single' for g in groups) else 1
        assert self.nwin * self.npat * 4 <= 12

    def tra(self, pat, win, i):
        return V_TRA + (pat * self.nwin + win) * 4 + i

    def setup(self, a, x_off_sgpr):
        NB = self.NB
        L = V_LANE
        a.e(f"""
        s_lshl_b32 s{S_T}, s{S_R}, 2
        s_add_u32 s{S_T}, s{S_T}, s{S_WAVE}
        s_lshl_b32 s{S_T}, s{S_T}, 16
        s_add_u32 s{S_T}, s{S_T}, s{x_off_sgpr}
        """)
        srd(a, S_X, S_WS, f's{S_T}', 65536)
        for i in range(4):
            a.e(f"""
            s_add_u32 s{S_T}, s{S_WAVE}, {i}
            s_and_b32 s{S_T}, s{S_T}, 3
            s_lshl_b32 s{S_T+1}, s{S_T}, 10
            s_mul_i32 s{S_T+2+i}, s{S_T}, {self.ksz}
            v_lshl_add_u32 v{V_XOFF+i}, v{L}, 4, s{S_T+1}
            """)
        t0, t1, t2 = V_T, V_T + 1, V_T + 2
        a.e(f"""
        v_bfe_u32 v{t0}, v{L}, 2, 2
        v_lshlrev_b32 v{t0}, 6, v{t0}
        v_bfe_u32 v{t1}, v{L}, 4, 1
        v_lshl_add_u32 v{t0}, v{t1}, 5, v{t0}
        v_and_b32 v{t1}, 3, v{L}
        v_lshl_add_u32 v{t0}, v{t1}, 3, v{t0}
        v_lshrrev_b32 v{t1}, 5, v{L}
        """)
        for pat in range(self.npat):
            a.e(f'v_lshl_add_u32 v{t2}, v{t1}, {9 if pat == 0 else 8}, v{t0}')
            for win in range(self.nwin):
                for i in range(4):
                    a.e(f'v_add_u32 v{self.tra(pat, win, i)}, s{S_T+2+i}, v{t2}')
                    if win: a.e(f'v_add_u32 v{self.tra(pat, win, i)}, {65536*win}, v{self.tra(pat, win, i)}')
        q = 0
        for (kind, s_srd, ld, colsg, colc, soff) in self.groups:
            if kind == 'pair':
                a.e(f"""
                v_lshrrev_b32 v{t0}, 5, v{L}
                v_bfe_u32 v{t1}, v{L}, 2, 2
                v_lshl_add_u32 v{t0}, v{t0}, 2, v{t1}
                s_lshl_b32 s{S_T}, s{S_WAVE}, 4
                v_add_u32 v{t0}, s{S_T}, v{t0}
                s_mov_b32 s{S_T+1}, {ld}
                v_mul_lo_u32 v{t0}, v{t0}, s{S_T+1}
                v_bfe_u32 v{t1}, v{L}, 4, 1
                v_lshl_add_u32 v{t0}, v{t1}, 6, v{t0}
                v_and_b32 v{t1}, 3, v{L}
                v_lshl_add_u32 v{t0}, v{t1}, 4, v{t0}
                """)
                if colsg is not None: a.e(f'v_add_u32 v{t0}, s{colsg}, v{t0}')
                a.e(f'v_add_u32 v{V_DOFF+q}, {colc + WBIAS - 1024*q}, v{t0}')
                a.e(f'v_add_u32 v{V_DOFF+q+1}, {colc + WBIAS + 8*ld - 1024*(q+1)}, v{t0}')
                q += 2
            else:
                assert ld == 64
                a.e(f"""
                s_lshl_b32 s{S_T}, s{S_WAVE}, 10
                s_add_u32 s{S_T}, s{S_T}, {colc + WBIAS - 1024*q}
                v_lshl_add_u32 v{V_DOFF+q}, v{L}, 4, s{S_T}
                """)
                q += 1
        a.e(f"""
        s_mul_i32 s{S_M0B}, s{S_WAVE}, {self.ksz}
        s_mov_b32 s{S_XO}, 0
        s_mov_b32 s{S_WO}, 0
        s_mov_b32 s{S_WO2}, 0
        s_mov_b32 s{S_ONES}, 0x3f803f80
        """)
        for i in range(16 * NB): a.e(f'v_mov_b32 v{V_ACC+i}, 0')
        if self.stats:
            for r in [V_SUM, V_SQ] + [V_CS + i for i in range(NB)]: a.e(f'v_mov_b32 v{r}, 0')

    def xreg(self, u, i): return V_XR + (u * 4 + i) * 4
    def wf(self, par, nb): return V_WF + par * 16 + nb * 4

    def issue_x(self, a, u, i):
        a.e(f'buffer_load_dwordx4 {vr(self.xreg(u, i), 4)}, v{V_XOFF+i}, s[{S_X}:{S_X+3}], s{S_XO} offen')
    def issue_w(self, a, slot):
        a.e(f's_add_u32 m0, s{S_M0B}, {slot * self.slot}')
        q = 0
        for (kind, s_srd, ld, colsg, colc, soff) in self.groups:
            for j in range(2 if kind == 'pair' else 1):
                a.e(f'buffer_load_dwordx4 v{V_DOFF+q}, s[{s_srd}:{s_srd+3}], s{soff} offen offset:{1024*q} lds')
                q += 1
        done = set()
        for (kind, s_srd, ld, colsg, colc, soff) in self.groups:
            if soff not in done:
                a.e(f's_add_u32 s{soff}, s{soff}, {64*ld}'); done.add(soff)
    def issue_tr(self, a, slot, i, par):
        for nb in range(self.NB):
            o, Q, pat = self.nbinfo[nb]
            off = slot * self.slot + o
            win = off // 65536; off -= win * 65536
            assert off + 2 * Q < 65536
            w = self.wf(par, nb)
            a.e(f'ds_read_b64_tr_b16 {vr(w, 2)}, v{self.tra(pat, win, i)} offset:{off}')
            a.e(f'ds_read_b64_tr_b16 {vr(w+2, 2)}, v{self.tra(pat, win, i)} offset:{off + 2*Q}')

    def prologue(self, a):
        U, NB = self.U, self.NB
        for s in range(U):
            for i in range(3): self.issue_x(a, s, i)
            self.issue_w(a, s)
            self.issue_x(a, s, 3)
            if self.nextra: self.extra_issue(a, s)
            a.e(f's_add_u32 s{S_XO}, s{S_XO}, 4096')
        a.e(f's_waitcnt vmcnt({(U-1)*(4+NB+self.nextra)})')
        a.e('s_barrier')
        self.issue_tr(a, 0, 0, 0)

    def loop(self, a):
        U, NB = self.U, self.NB
        a.e(f's_mov_b32 s{S_CNT}, {16 // U}')
        beg = a.loop_begin(f'L_{self.tag}_loop')
        n = 0
        for u in range(U):
            for i in range(4):
                par = n & 1
                a.e('s_waitcnt lgkmcnt(0)')
                if i == 3:
                    a.e(f's_waitcnt vmcnt({(U-2)*(4+NB+self.nextra)+3})')
                    a.e('s_barrier')
                    self.issue_tr(a, (u + 1) % U, 0, par ^ 1)
                    self.issue_w(a, u)
                else:
                    self.issue_tr(a, u, i + 1, par ^ 1)
                x = self.xreg(u, i)
                fill = []
                if self.nextra and i == 1: fill += self.extra_consume(u)
                if self.stats:
                    for j in range(4):
                        fill.append(f'v_dot2c_f32_bf16 v{V_SUM}, s{S_ONES}, v{x+j}')
                        fill.append(f'v_dot2c_f32_bf16 v{V_SQ}, v{x+j}, v{x+j}')
                    if i == 0:
                        for nb in range(NB):
                            for j in range(4):
                                fill.append(f'v_dot2c_f32_bf16 v{V_CS+nb}, s{S_ONES}, v{self.wf(par, nb)+j}')
                per = (len(fill) + NB - 1) // NB
                for nb in range(NB):
                    acc = vr(V_ACC + 16 * nb, 16)
                    w = vr(self.wf(par, nb), 4)
                    if self.orient[nb] == 'T':
                        a.e(f'v_mfma_f32_32x32x16_bf16 {acc}, {w}, {vr(x, 4)}, {acc}')
                    else:
                        a.e(f'v_mfma_f32_32x32x16_bf16 {acc}, {vr(x, 4)}, {w}, {acc}')
                    for f in fill[nb * per:(nb + 1) * per]: a.e(f)
                self.issue_x(a, u, i)
                if i == 3:
                    if self.nextra: self.extra_issue(a, u)
                    a.e(f's_add_u32 s{S_XO}, s{S_XO}, 4096')
                n += 1
        a.e(f's_sub_u32 s{S_CNT}, s{S_CNT}, 1')
        a.e(f's_cmp_lg_u32 s{S_CNT}, 0')
        a.loop_end(beg, f's_cbranch_scc1 L_{self.tag}_loop')
        a.e('s_waitcnt vmcnt(0) lgkmcnt(0)')
        a.e('s_barrier')

def pack_tile(a, src, dst):
    for j in range(8):
        a.e(f'v_cvt_pk_bf16_f32 v{dst+j}, v{src+2*j}, v{src+2*j+1}')

def gen_out(a, U):
    ks = []
    g = G('out', [('pair', S_W, 2048, S_T + 7, 0, S_WO)], ['T', 'T'], False, U)
    V_RES = 64
    for l in range(4):
        k = Kernel(f'out{l}_kernel', 256, 0, 64, g.lds)
        ks.append(k)
        entry(a, k.name)
        a.e(f"""
        s_load_dwordx2 s[{S_P1}:{S_P1+1}], s[0:1], {KA['A_wo'] if l % 2 == 0 else KA['B_wo']}
        s_mov_b32 s{S_A0}, {WS_O[l]}
        s_mov_b32 s{S_A0+1}, {WS_X[l]}
        s_mov_b32 s{S_A0+2}, {WS_X[l+1] if l < 3 else 0}
        s_mov_b32 s{S_A0+3}, {1 if l == 3 else 0}
        """)
        if l < 3: a.e('s_branch L_out_body')
    a.raw('L_out_body:')
    a.e(f"""
    s_cmp_ge_u32 s2, 256
    s_cbranch_scc1 L_out_end
    s_load_dwordx2 s[{S_WS}:{S_WS+1}], s[0:1], {KA['ws']}
    s_load_dwordx2 s[{S_P2}:{S_P2+1}], s[0:1], {KA['out']}
    """)
    wg_map(a)
    a.e('s_waitcnt lgkmcnt(0)')
    srd(a, S_W, S_P1, 0, 2 * MB, WBIAS)
    a.e(f's_lshl_b32 s{S_T+7}, s{S_G}, 7')
    g.setup(a, S_A0)
    a.e(f"""
    s_lshl_b32 s{S_T}, s{S_R}, 2
    s_add_u32 s{S_T}, s{S_T}, s{S_WAVE}
    s_lshl_b32 s{S_T}, s{S_T}, 16
    s_lshl_b32 s{S_T+1}, s{S_G}, 12
    s_add_u32 s{S_T+6}, s{S_T}, s{S_T+1}
    s_add_u32 s{S_T}, s{S_T+6}, s{S_A0+1}
    """)
    srd(a, S_M2, S_WS, f's{S_T}', 4096)
    a.e(f's_add_u32 s{S_T}, s{S_T+6}, s{S_A0+2}')
    srd(a, S_M1, S_WS, f's{S_T}', 4096)
    srd(a, S_M3, S_P2, 0, 4 * MB)
    VL16 = V_T + 3
    a.e(f'v_lshlrev_b32 v{VL16}, 4, v{V_LANE}')
    for j in range(4):
        a.e(f'buffer_load_dwordx4 {vr(V_RES+4*j, 4)}, v{VL16}, s[{S_M2}:{S_M2+3}], 0 offen offset:{1024*j}')
    g.prologue(a)
    g.loop(a)
    T0 = V_XR
    for nb in range(2):
        for j in range(8):
            rsrc = V_RES + nb * 8 + j
            acc = V_ACC + 16 * nb + 2 * j
            a.e(f'v_lshlrev_b32 v{T0}, 16, v{rsrc}')
            a.e(f'v_and_b32 v{T0+1}, 0xffff0000, v{rsrc}')
            a.e(f'v_add_f32 v{acc}, v{acc}, v{T0}')
            a.e(f'v_add_f32 v{acc+1}, v{acc+1}, v{T0+1}')
            a.e(f'v_cvt_pk_bf16_f32 v{T0+8+nb*8+j}, v{acc}, v{acc+1}')
    P = T0 + 8
    a.e(f's_cmp_eq_u32 s{S_A0+3}, 1')
    a.e('s_cbranch_scc1 L_out_final')
    for j in range(4):
        a.e(f'buffer_store_dwordx4 {vr(P+4*j, 4)}, v{VL16}, s[{S_M1}:{S_M1+3}], 0 offen offset:{1024*j}')
    a.e('s_endpgm')
    a.raw('L_out_final:')
    a.e(f"""
    v_and_b32 v{T0}, 31, v{V_LANE}
    v_lshrrev_b32 v{T0+1}, 5, v{V_LANE}
    v_lshlrev_b32 v{T0}, 11, v{T0}
    v_lshl_add_u32 v{T0}, v{T0+1}, 4, v{T0}
    s_lshl_b32 s{S_T}, s{S_R}, 2
    s_add_u32 s{S_T}, s{S_T}, s{S_WAVE}
    s_lshl_b32 s{S_T}, s{S_T}, 16
    s_lshl_b32 s{S_T+1}, s{S_G}, 7
    s_add_u32 s{S_T}, s{S_T}, s{S_T+1}
    """)
    for j in range(4):
        b = P + 4 * j
        a.e(f'v_permlane32_swap_b32 v{b}, v{b+2}')
        a.e(f'v_permlane32_swap_b32 v{b+1}, v{b+3}')
        a.e(f'buffer_store_dwordx4 {vr(b, 4)}, v{T0}, s[{S_M3}:{S_M3+3}], s{S_T} offen offset:{32*j}')
    a.raw('L_out_end:')
    a.e('s_endpgm')
    return ks

def xhalf(a, op, dst, src, tmp):
    a.e(f'v_mov_b32 v{tmp}, v{src}')
    a.e(f'v_permlane32_swap_b32 v{tmp}, v{src}')
    a.e(f'{op} v{dst}, v{tmp}, v{src}')

def ln_epilogue(a, g, T):
    NB = g.NB
    RS = T; t1 = T + 1; t2 = T + 2; t3 = T + 3
    TF = T + 4
    CF = T + 8
    RD = T + 24
    a.e(f"""
    v_lshlrev_b32 v{t1}, 4, v{V_LANE}
    s_lshl_b32 s{S_T}, s{S_WAVE}, 2
    v_add_u32 v{t2}, s{S_T}, v{t1}
    """)
    for nb in range(NB):
        a.e(f'ds_write_b32 v{t2}, v{V_CS+nb} offset:{nb*1024}')
    xhalf(a, 'v_add_f32', V_SUM, V_SUM, t3)
    xhalf(a, 'v_add_f32', V_SQ, V_SQ, t3)
    a.e(f"""
    v_mul_f32 v{V_SUM}, {f32hex(-1.0/1024)}, v{V_SUM}
    v_mul_f32 v{V_SQ}, {f32hex(1.0/1024)}, v{V_SQ}
    v_fma_f32 v{V_SQ}, -v{V_SUM}, v{V_SUM}, v{V_SQ}
    v_max_f32 v{V_SQ}, 0, v{V_SQ}
    v_add_f32 v{V_SQ}, {f32hex(1e-5)}, v{V_SQ}
    v_rsq_f32 v{RS}, v{V_SQ}
    v_and_b32 v{t3}, 0xffff0000, v{V_SUM}
    v_sub_f32 v{V_SUM}, v{V_SUM}, v{t3}
    v_cvt_pk_bf16_f32 v{TF}, v{t3}, v{t3}
    v_cvt_pk_bf16_f32 v{TF+1}, v{V_SUM}, 0
    v_mov_b32 v{TF+2}, 0
    v_mov_b32 v{TF+3}, 0
    s_waitcnt lgkmcnt(0)
    s_barrier
    """)
    for nb in range(NB):
        a.e(f'ds_read_b128 {vr(RD+4*nb, 4)}, v{t1} offset:{nb*1024}')
    for nb in range(NB):
        r = RD + 4 * nb; c = CF + 4 * nb
        a.e(f's_waitcnt lgkmcnt({NB-1-nb})')
        a.e(f"""
        v_add_f32 v{r}, v{r}, v{r+1}
        v_add_f32 v{r+2}, v{r+2}, v{r+3}
        v_add_f32 v{r}, v{r}, v{r+2}
        v_and_b32 v{r+1}, 0xffff0000, v{r}
        v_sub_f32 v{r}, v{r}, v{r+1}
        v_cvt_pk_bf16_f32 v{c}, v{r+1}, v{r}
        v_cvt_pk_bf16_f32 v{c+1}, v{r+1}, 0
        v_mov_b32 v{c+2}, 0
        v_mov_b32 v{c+3}, 0
        """)
        acc = vr(V_ACC + 16 * nb, 16)
        if g.orient[nb] == 'T':
            a.e(f'v_mfma_f32_32x32x16_bf16 {acc}, {vr(c, 4)}, {vr(TF, 4)}, {acc}')
        else:
            a.e(f'v_mfma_f32_32x32x16_bf16 {acc}, {vr(TF, 4)}, {vr(c, 4)}, {acc}')
    return RS

def scale_pack_T(a, acc, sc, dst):
    for j in range(8):
        a.e(f'v_pk_mul_f32 {vr(acc+2*j, 2)}, {vr(acc+2*j, 2)}, {vr(sc, 2)}')
    pack_tile(a, acc, dst)

def rstd_rows(a, RS, dst, lds_off, tmp):
    a.e(f"""
    s_lshl_b32 s{S_T}, s{S_WAVE}, 7
    s_add_u32 s{S_T}, s{S_T}, {lds_off}
    v_and_b32 v{tmp}, 31, v{V_LANE}
    v_lshl_add_u32 v{tmp}, v{tmp}, 2, s{S_T}
    ds_write_b32 v{tmp}, v{RS}
    v_lshrrev_b32 v{tmp}, 5, v{V_LANE}
    v_lshl_add_u32 v{tmp}, v{tmp}, 4, s{S_T}
    s_waitcnt lgkmcnt(0)
    """)
    for q in range(4):
        a.e(f'ds_read_b128 {vr(dst+4*q, 4)}, v{tmp} offset:{32*q}')

def featmap(a, P, EN, T):
    mx, mn, t = T, T + 2, T + 4
    a.e(f'v_max3_f32 v{mx}, v{P}, v{P+1}, v{P+2}')
    a.e(f'v_min3_f32 v{mn}, v{P}, v{P+1}, v{P+2}')
    for j in range(3, 15, 2):
        a.e(f'v_max3_f32 v{mx}, v{mx}, v{P+j}, v{P+j+1}')
        a.e(f'v_min3_f32 v{mn}, v{mn}, v{P+j}, v{P+j+1}')
    a.e(f'v_max_f32 v{mx}, v{mx}, v{P+15}')
    a.e(f'v_min_f32 v{mn}, v{mn}, v{P+15}')
    xhalf(a, 'v_max_f32', mx, mx, t)
    xhalf(a, 'v_min_f32', mn, mn, t + 1)
    for j in range(8):
        a.e(f'v_pk_add_f32 {vr(EN+2*j, 2)}, {vr(mn, 2)}, {vr(P+2*j, 2)} op_sel_hi:[0,1] neg_lo:[0,1] neg_hi:[0,1]')
        a.e(f'v_pk_add_f32 {vr(P+2*j, 2)}, {vr(P+2*j, 2)}, {vr(mx, 2)} op_sel_hi:[1,0] neg_lo:[0,1] neg_hi:[0,1]')
    for j in range(16):
        a.e(f'v_exp_f32 v{P+j}, v{P+j}')
        a.e(f'v_exp_f32 v{EN+j}, v{EN+j}')
    a.e(f'v_pk_add_f32 {vr(mx, 2)}, {vr(P, 2)}, {vr(P+2, 2)}')
    a.e(f'v_pk_add_f32 {vr(mn, 2)}, {vr(EN, 2)}, {vr(EN+2, 2)}')
    for j in range(2, 8):
        a.e(f'v_pk_add_f32 {vr(mx, 2)}, {vr(mx, 2)}, {vr(P+2*j, 2)}')
        a.e(f'v_pk_add_f32 {vr(mn, 2)}, {vr(mn, 2)}, {vr(EN+2*j, 2)}')
    a.e(f'v_add_f32 v{mx}, v{mx}, v{mx+1}')
    a.e(f'v_add_f32 v{mn}, v{mn}, v{mn+1}')
    xhalf(a, 'v_add_f32', mx, mx, t)
    xhalf(a, 'v_add_f32', mn, mn, t + 1)

def wphi_dma(a, lds_off, vtmp):
    srd(a, S_M2, S_P2, 0, 65536)
    a.e(f"""
    s_lshl_b32 s{S_T}, s{S_G}, 12
    s_lshl_b32 s{S_T+1}, s{S_WAVE}, 10
    s_add_u32 s{S_T}, s{S_T}, s{S_T+1}
    v_lshlrev_b32 v{vtmp}, 4, v{V_LANE}
    s_add_u32 m0, s{S_T+1}, {lds_off}
    buffer_load_dwordx4 v{vtmp}, s[{S_M2}:{S_M2+3}], s{S_T} offen lds
    """)

def single_tr_addr(a, dst, t1):
    L = V_LANE
    a.e(f"""
    v_bfe_u32 v{dst}, v{L}, 2, 2
    v_lshlrev_b32 v{dst}, 6, v{dst}
    v_bfe_u32 v{t1}, v{L}, 4, 1
    v_lshl_add_u32 v{dst}, v{t1}, 5, v{dst}
    v_and_b32 v{t1}, 3, v{L}
    v_lshl_add_u32 v{dst}, v{t1}, 3, v{dst}
    v_lshrrev_b32 v{t1}, 5, v{L}
    v_lshl_add_u32 v{dst}, v{t1}, 8, v{dst}
    """)

def read_wphi(a, dst, vaddr, lds_off, hd):
    for ks in range(2):
        o = lds_off + hd * 2048 + ks * 1024
        assert o + 512 < 65536 or True
        a.e(f'ds_read_b64_tr_b16 {vr(dst+4*ks, 2)}, v{vaddr} offset:{o}')
        a.e(f'ds_read_b64_tr_b16 {vr(dst+4*ks+2, 2)}, v{vaddr} offset:{o+512}')

def gen_kva(a, U):
    ks = []
    g = G('kva', [('pair', S_W, 6144, S_T + 7, 2048, S_WO), ('pair', S_W, 6144, S_T + 7, 4096, S_WO)], ['T', 'T', 'N', 'N'], True, U)
    L_WPHI = g.lds
    lds_total = g.lds + 4096
    L_RS = 4096; L_PHI = 8192; L_VF = 8192 + 32768
    assert L_VF + 16384 <= g.lds
    for j in range(2):
        k = Kernel(f'kva{j}_kernel', 256, 0, 64, lds_total)
        ks.append(k)
        entry(a, k.name)
        a.e(f"""
        s_mov_b32 s{S_A0}, {WS_X[2*j]}
        s_mov_b32 s{S_A0+1}, {WS_KVP[j]}
        s_mov_b32 s{S_A0+2}, {WS_ZP[j]}
        """)
        if j < 1: a.e('s_branch L_kva_body')
    a.raw('L_kva_body:')
    a.e(f"""
    s_cmp_ge_u32 s2, 256
    s_cbranch_scc1 L_kva_end
    s_load_dwordx2 s[{S_WS}:{S_WS+1}], s[0:1], {KA['ws']}
    s_load_dwordx2 s[{S_P1}:{S_P1+1}], s[0:1], {KA['A_wqkv']}
    s_load_dwordx2 s[{S_P2}:{S_P2+1}], s[0:1], {KA['A_w_phi']}
    """)
    wg_map(a)
    a.e('s_waitcnt lgkmcnt(0)')
    srd(a, S_W, S_P1, 0, 6 * MB, WBIAS)
    a.e(f's_lshl_b32 s{S_T+7}, s{S_G}, 7')
    g.setup(a, S_A0)
    wphi_dma(a, L_WPHI, V_T)
    g.prologue(a)
    g.loop(a)
    T = V_XR
    RS = ln_epilogue(a, g, T)
    SC = T + 2
    RR = T + 40
    VA = T + 56; TMP = T + 57
    WP = T + 60
    KF = T + 68
    PP = T + 76
    EN = T + 92
    FT = T + 108
    WA = T + 116
    a.e(f'v_mul_f32 v{SC}, {f32hex(LOG2E)}, v{RS}')
    a.e(f'v_mul_f32 v{SC+1}, {f32hex(LOG2E)}, v{RS}')
    rstd_rows(a, RS, RR, L_RS, TMP)
    single_tr_addr(a, VA, TMP)
    a.e(f'v_add_u32 v{VA}, {L_WPHI}, v{VA}')
    t0, t1, t2 = FT, FT + 1, FT + 2
    a.e(f"""
    v_and_b32 v{t0}, 1, v{V_LANE}
    v_bfe_u32 v{t1}, v{V_LANE}, 2, 2
    v_lshl_add_u32 v{t0}, v{t1}, 1, v{t0}
    v_bfe_u32 v{t1}, v{V_LANE}, 1, 1
    v_lshl_add_u32 v{t0}, v{t1}, 3, v{t0}        ; s(t)
    v_lshrrev_b32 v{t1}, 5, v{V_LANE}            ; h
    v_xor_b32 v{t0}, v{t0}, v{t1}                ; s ^ h
    v_and_b32 v{t1}, 31, v{V_LANE}
    s_lshl_b32 s{S_T}, s{S_WAVE}, 12
    s_add_u32 s{S_T}, s{S_T}, {L_PHI}
    v_lshl_add_u32 v{t1}, v{t1}, 7, s{S_T}       ; base + t*128
    """)
    a.e(f'v_mov_b32 v{WA}, v{t0}')
    a.e(f'v_mov_b32 v{WA+1}, v{t1}')
    a.e('s_waitcnt lgkmcnt(0)')
    a.e(f"""
    s_lshl_b32 s{S_T}, s{S_WAVE}, 11
    s_add_u32 s{S_T}, s{S_T}, {L_VF}
    v_lshl_add_u32 v{WA+2}, v{V_LANE}, 4, s{S_T}
    """)
    for hd in range(2):
        acc = V_ACC + 16 * (2 + hd)
        for j in range(8):
            a.e(f'v_pk_mul_f32 {vr(acc+2*j, 2)}, {vr(acc+2*j, 2)}, {vr(RR+2*j, 2)}')
        pack_tile(a, acc, KF)
        for f in range(2):
            a.e(f'ds_write_b128 v{WA+2}, {vr(KF+4*f, 4)} offset:{hd*8192 + f*1024}')
    for hd in range(2):
        acc = V_ACC + 16 * hd
        read_wphi(a, WP, VA, 0, hd)
        scale_pack_T(a, acc, SC, KF)
        a.e('s_waitcnt lgkmcnt(0)')
        a.e(f'v_mfma_f32_32x32x16_bf16 {vr(PP, 16)}, {vr(WP, 4)}, {vr(KF, 4)}, 0')
        a.e(f'v_mfma_f32_32x32x16_bf16 {vr(PP, 16)}, {vr(WP+4, 4)}, {vr(KF+4, 4)}, {vr(PP, 16)}')
        featmap(a, PP, EN, FT)
        a.e(f"""
        v_rcp_f32 v{FT}, v{FT}
        v_rcp_f32 v{FT+2}, v{FT+2}
        """)
        for fb, E, S in ((0, PP, FT), (1, EN, FT + 2)):
            for j in range(8):
                a.e(f'v_pk_mul_f32 {vr(E+2*j, 2)}, {vr(E+2*j, 2)}, {vr(S, 2)} op_sel_hi:[1,0]')
            pack_tile(a, E, KF)
            for gq in range(4):
                a.e(f'v_xor_b32 v{FT+4}, {fb*8 + 2*gq}, v{WA}')
                a.e(f'v_lshl_add_u32 v{FT+4}, v{FT+4}, 3, v{WA+1}')
                a.e(f'ds_write_b64 v{FT+4}, {vr(KF+2*gq, 2)} offset:{hd*16384}')
    a.e('s_waitcnt lgkmcnt(0)')
    a.e('s_barrier')
    AD = T + 40
    BD = T + 42
    a.e(f"""
    v_bfe_u32 v{t0}, v{V_LANE}, 2, 1             ; r&1
    v_lshrrev_b32 v{t1}, 5, v{V_LANE}            ; h
    v_lshl_add_u32 v{t0}, v{t1}, 1, v{t0}
    v_bfe_u32 v{t2}, v{V_LANE}, 3, 1             ; r>>1
    v_lshl_add_u32 v{t0}, v{t2}, 3, v{t0}
    v_bfe_u32 v{t2}, v{V_LANE}, 4, 1             ; g
    v_lshlrev_b32 v{t2}, 2, v{t2}
    v_and_b32 v{FT+3}, 3, v{V_LANE}
    v_add_u32 v{t2}, v{t2}, v{FT+3}              ; 4g + c
    s_and_b32 s{S_T}, s{S_WAVE}, 1
    s_lshl_b32 s{S_T}, s{S_T}, 3
    v_add_u32 v{t2}, s{S_T}, v{t2}               ; q
    v_xor_b32 v{t0}, v{t0}, v{t2}                ; q ^ s
    v_bfe_u32 v{t2}, v{V_LANE}, 2, 2             ; r
    v_lshl_add_u32 v{t1}, v{t1}, 2, v{t2}        ; 4h + r
    v_lshlrev_b32 v{t1}, 7, v{t1}                ; *128
    s_lshr_b32 s{S_T+1}, s{S_WAVE}, 1            ; head
    s_lshl_b32 s{S_T}, s{S_T+1}, 14
    s_add_u32 s{S_T}, s{S_T}, {L_PHI}
    v_add_u32 v{t1}, s{S_T}, v{t1}
    v_lshl_add_u32 v{AD}, v{t0}, 3, v{t1}
    v_xor_b32 v{t0}, 4, v{t0}
    v_lshl_add_u32 v{AD+1}, v{t0}, 3, v{t1}
    v_add_u32 v{AD+1}, 1024, v{AD+1}             ; + 8 tokens
    s_lshl_b32 s{S_T}, s{S_T+1}, 13
    s_add_u32 s{S_T}, s{S_T}, {L_VF}
    v_lshl_add_u32 v{BD}, v{V_LANE}, 4, s{S_T}
    """)
    AF = T + 44
    BF = T + 76
    ZZ = T + 43
    KV = V_ACC
    for ksx in range(8):
        a.e(f'ds_read_b64_tr_b16 {vr(AF+4*ksx, 2)}, v{AD} offset:{ksx*2048}')
        a.e(f'ds_read_b64_tr_b16 {vr(AF+4*ksx+2, 2)}, v{AD+1} offset:{ksx*2048}')
        a.e(f'ds_read_b128 {vr(BF+4*ksx, 4)}, v{BD} offset:{ksx*1024}')
    a.e(f'v_mov_b32 v{ZZ}, 0')
    a.e(f"""
    s_lshl_b32 s{S_T}, s{S_G}, 1
    s_add_u32 s{S_T}, s{S_T}, s{S_T+1}
    s_lshl_b32 s{S_T}, s{S_T}, 4
    s_add_u32 s{S_T}, s{S_T}, s{S_R}
    s_lshl_b32 s{S_T}, s{S_T}, 1
    s_and_b32 s{S_T+2}, s{S_WAVE}, 1
    s_add_u32 s{S_T}, s{S_T}, s{S_T+2}
    s_lshl_b32 s{S_T+2}, s{S_T}, 12
    s_add_u32 s{S_T+2}, s{S_T+2}, s{S_A0+1}
    """)
    srd(a, S_M1, S_WS, f's{S_T+2}', 4096)
    a.e(f"""
    s_lshl_b32 s{S_T+2}, s{S_T}, 8
    s_add_u32 s{S_T+2}, s{S_T+2}, s{S_A0+2}
    """)
    srd(a, S_M3, S_WS, f's{S_T+2}', 256)
    for ksx in range(8):
        n_out = min(15, 3 * (7 - ksx))
        a.e(f's_waitcnt lgkmcnt({n_out})')
        c = '0' if ksx == 0 else vr(KV, 16)
        a.e(f'v_mfma_f32_32x32x16_bf16 {vr(KV, 16)}, {vr(AF+4*ksx, 4)}, {vr(BF+4*ksx, 4)}, {c}')
        for j in range(4):
            a.e(f'v_dot2c_f32_bf16 v{ZZ}, s{S_ONES}, v{AF+4*ksx+j}')
    a.e(f'v_lshlrev_b32 v{t0}, 4, v{V_LANE}')
    a.e(f'v_lshlrev_b32 v{t1}, 2, v{V_LANE}')
    a.e(f'buffer_store_dword v{ZZ}, v{t1}, s[{S_M3}:{S_M3+3}], 0 offen')
    for q in range(4):
        a.e(f'buffer_store_dwordx4 {vr(KV+4*q, 4)}, v{t0}, s[{S_M1}:{S_M1+3}], 0 offen offset:{1024*q}')
    a.raw('L_kva_end:')
    a.e('s_endpgm')
    return ks

def gen_qa(a):
    U = 4
    ks = []
    g = G('qa', [('pair', S_W, 6144, S_T + 7, 0, S_WO)], ['T', 'T'], True, U)
    L_WPHI = g.lds
    lds_total = g.lds + 4096
    L_KV = 4096; L_Z = 4096 + 8192
    PR = 192; ZR = 120; KVS = 64; ZS = 80; VL16 = 81; VL4 = 82
    S_PO, S_ZO = S_A0 + 4, S_A0 + 5
    g.nextra = 5
    def ex_issue(a, u):
        for q in range(4):
            a.e(f'buffer_load_dwordx4 {vr(PR+16*u+4*q, 4)}, v{VL16}, s[{S_M1}:{S_M1+3}], s{S_PO} offen offset:{1024*q}')
        a.e(f'buffer_load_dword v{ZR+u}, v{VL4}, s[{S_M3}:{S_M3+3}], s{S_ZO} offen')
        a.e(f's_add_u32 s{S_PO}, s{S_PO}, 8192')
        a.e(f's_add_u32 s{S_ZO}, s{S_ZO}, 512')
    def ex_consume(u):
        return [f'v_pk_add_f32 {vr(KVS+2*j, 2)}, {vr(KVS+2*j, 2)}, {vr(PR+16*u+2*j, 2)}' for j in range(8)] + [f'v_add_f32 v{ZS}, v{ZS}, v{ZR+u}']
    g.extra_issue = ex_issue; g.extra_consume = ex_consume
    for j in range(2):
        k = Kernel(f'qa{j}_kernel', 256, 0, 64, lds_total)
        ks.append(k)
        entry(a, k.name)
        a.e(f"""
        s_mov_b32 s{S_A0}, {WS_X[2*j]}
        s_mov_b32 s{S_A0+1}, {WS_KVP[j]}
        s_mov_b32 s{S_A0+2}, {WS_ZP[j]}
        s_mov_b32 s{S_A0+3}, {WS_O[2*j]}
        """)
        if j < 1: a.e('s_branch L_qa_body')
    a.raw('L_qa_body:')
    a.e(f"""
    s_cmp_ge_u32 s2, 256
    s_cbranch_scc1 L_qa_end
    s_load_dwordx2 s[{S_WS}:{S_WS+1}], s[0:1], {KA['ws']}
    s_load_dwordx2 s[{S_P1}:{S_P1+1}], s[0:1], {KA['A_wqkv']}
    s_load_dwordx2 s[{S_P2}:{S_P2+1}], s[0:1], {KA['A_w_phi']}
    """)
    wg_map(a)
    a.e('s_waitcnt lgkmcnt(0)')
    srd(a, S_W, S_P1, 0, 6 * MB, WBIAS)
    a.e(f's_lshl_b32 s{S_T+7}, s{S_G}, 7')
    g.setup(a, S_A0)
    wphi_dma(a, L_WPHI, V_T)
    a.e(f"""
    s_lshr_b32 s{S_T+1}, s{S_WAVE}, 1
    s_lshl_b32 s{S_T}, s{S_G}, 1
    s_add_u32 s{S_T}, s{S_T}, s{S_T+1}
    s_lshl_b32 s{S_T}, s{S_T}, 5
    s_and_b32 s{S_T+2}, s{S_WAVE}, 1
    s_add_u32 s{S_T}, s{S_T}, s{S_T+2}
    s_lshl_b32 s{S_T+2}, s{S_T}, 12
    s_add_u32 s{S_T+2}, s{S_T+2}, s{S_A0+1}
    """)
    srd(a, S_M1, S_WS, f's{S_T+2}', 15 * 8192 + 4096)
    a.e(f"""
    s_lshl_b32 s{S_T+2}, s{S_T}, 8
    s_add_u32 s{S_T+2}, s{S_T+2}, s{S_A0+2}
    """)
    srd(a, S_M3, S_WS, f's{S_T+2}', 15 * 512 + 256)
    a.e(f"""
    s_mov_b32 s{S_PO}, 0
    s_mov_b32 s{S_ZO}, 0
    v_lshlrev_b32 v{VL16}, 4, v{V_LANE}
    v_lshlrev_b32 v{VL4}, 2, v{V_LANE}
    v_mov_b32 v{ZS}, 0
    """)
    for i in range(16): a.e(f'v_mov_b32 v{KVS+i}, 0')
    g.prologue(a)
    g.loop(a)
    T = V_XR
    KF = T + 68
    pack_tile(a, KVS, KF)
    a.e(f"""
    s_lshl_b32 s{S_T}, s{S_WAVE}, 11
    s_add_u32 s{S_T}, s{S_T}, {L_KV}
    v_add_u32 v{T+56}, s{S_T}, v{VL16}
    ds_write_b128 v{T+56}, {vr(KF, 4)}
    ds_write_b128 v{T+56}, {vr(KF+4, 4)} offset:1024
    """)
    xhalf(a, 'v_add_f32', ZS, ZS, T + 57)
    a.e(f"""
    s_lshl_b32 s{S_T}, s{S_WAVE}, 7
    s_add_u32 s{S_T}, s{S_T}, {L_Z}
    v_and_b32 v{T+57}, 31, v{V_LANE}
    v_lshl_add_u32 v{T+57}, v{T+57}, 2, s{S_T}
    ds_write_b32 v{T+57}, v{ZS}
    """)
    RS = ln_epilogue(a, g, T)
    SC = T + 2
    VA = T + 56; TMP = T + 57; VZ = T + 58
    WP = T + 60; PP = T + 76; EN = T + 92; FT = T + 108
    KVF = 64
    ZV = T + 8
    NP = 96; NN = 112
    EF = T + 40
    a.e(f'v_mul_f32 v{SC}, {f32hex(LOG2E)}, v{RS}')
    a.e(f'v_mul_f32 v{SC+1}, {f32hex(LOG2E)}, v{RS}')
    single_tr_addr(a, VA, TMP)
    a.e(f"""
    v_add_u32 v{VA}, {L_WPHI}, v{VA}
    v_lshrrev_b32 v{VZ}, 5, v{V_LANE}
    v_lshlrev_b32 v{VZ}, 4, v{VZ}
    s_lshl_b32 s{S_T}, s{S_R}, 2
    s_add_u32 s{S_T}, s{S_T}, s{S_WAVE}
    s_lshl_b32 s{S_T}, s{S_T}, 16
    s_lshl_b32 s{S_T+1}, s{S_G}, 12
    s_add_u32 s{S_T}, s{S_T}, s{S_T+1}
    s_add_u32 s{S_T}, s{S_T}, s{S_A0+3}
    """)
    srd(a, S_M1, S_WS, f's{S_T}', 4096)
    for hd in range(2):
        acc = V_ACC + 16 * hd
        read_wphi(a, WP, VA, 0, hd)
        scale_pack_T(a, acc, SC, KF)
        a.e('s_waitcnt lgkmcnt(0)')
        a.e(f'v_mfma_f32_32x32x16_bf16 {vr(PP, 16)}, {vr(WP, 4)}, {vr(KF, 4)}, 0')
        a.e(f'v_mfma_f32_32x32x16_bf16 {vr(PP, 16)}, {vr(WP+4, 4)}, {vr(KF+4, 4)}, {vr(PP, 16)}')
        for q in range(4):
            a.e(f'ds_read_b128 {vr(KVF+4*q, 4)}, v{VL16} offset:{L_KV + hd*4096 + q*1024}')
        for fb in range(2):
            for q in range(4):
                a.e(f'ds_read_b128 {vr(ZV+16*fb+4*q, 4)}, v{VZ} offset:{L_Z + hd*256 + fb*128 + 32*q}')
        featmap(a, PP, EN, FT)
        pack_tile(a, PP, EF)
        pack_tile(a, EN, EF + 8)
        a.e('s_waitcnt lgkmcnt(0)')
        a.e(f'v_mfma_f32_32x32x16_bf16 {vr(NP, 16)}, {vr(KVF, 4)}, {vr(EF, 4)}, 0')
        a.e(f'v_mfma_f32_32x32x16_bf16 {vr(NP, 16)}, {vr(KVF+4, 4)}, {vr(EF+4, 4)}, {vr(NP, 16)}')
        a.e(f'v_mfma_f32_32x32x16_bf16 {vr(NN, 16)}, {vr(KVF+8, 4)}, {vr(EF+8, 4)}, 0')
        a.e(f'v_mfma_f32_32x32x16_bf16 {vr(NN, 16)}, {vr(KVF+12, 4)}, {vr(EF+12, 4)}, {vr(NN, 16)}')
        D1, D2 = FT + 4, FT + 6
        a.e(f'v_pk_mul_f32 {vr(D1, 2)}, {vr(PP, 2)}, {vr(ZV, 2)}')
        a.e(f'v_pk_mul_f32 {vr(D2, 2)}, {vr(EN, 2)}, {vr(ZV+16, 2)}')
        for j in range(1, 8):
            a.e(f'v_pk_fma_f32 {vr(D1, 2)}, {vr(PP+2*j, 2)}, {vr(ZV+2*j, 2)}, {vr(D1, 2)}')
            a.e(f'v_pk_fma_f32 {vr(D2, 2)}, {vr(EN+2*j, 2)}, {vr(ZV+16+2*j, 2)}, {vr(D2, 2)}')
        a.e(f"""
        v_rcp_f32 v{FT}, v{FT}
        v_rcp_f32 v{FT+2}, v{FT+2}
        v_add_f32 v{D1}, v{D1}, v{D1+1}
        v_add_f32 v{D2}, v{D2}, v{D2+1}
        v_mul_f32 v{D1}, v{D1}, v{FT}
        v_fma_f32 v{D1}, v{D2}, v{FT+2}, v{D1}
        """)
        xhalf(a, 'v_add_f32', D1, D1, D2)
        a.e(f"""
        v_add_f32 v{D1}, {f32hex(1e-6)}, v{D1}
        v_rcp_f32 v{D1}, v{D1}
        v_mul_f32 v{FT}, v{FT}, v{D1}
        v_mul_f32 v{FT+2}, v{FT+2}, v{D1}
        """)
        for j in range(8):
            a.e(f'v_pk_mul_f32 {vr(NP+2*j, 2)}, {vr(NP+2*j, 2)}, {vr(FT, 2)} op_sel_hi:[1,0]')
            a.e(f'v_pk_fma_f32 {vr(NP+2*j, 2)}, {vr(NN+2*j, 2)}, {vr(FT+2, 2)}, {vr(NP+2*j, 2)} op_sel_hi:[1,0,1]')
        OP = acc
        pack_tile(a, NP, OP)
        for f in range(2):
            a.e(f'buffer_store_dwordx4 {vr(OP+4*f, 4)}, v{VL16}, s[{S_M1}:{S_M1+3}], 0 offen offset:{hd*2048 + f*1024}')
    a.raw('L_qa_end:')
    a.e('s_endpgm')
    return ks

QSCALE = LOG2E / (32 ** 0.5)
def gen_qkvb(a, U):
    ks = []
    gp = G('qb', [('pair', S_W, 2048, S_T + 7, 0, S_WO)], ['T', 'T'], True, U)
    gk = G('qbk', [('pair', S_W, 2048, S_T + 7, 0, S_WO), ('single', S_W2, 64, None, 0, S_WO2)], ['T', 'T', 'T'], True, U)
    gv = G('qbv', [('pair', S_W, 2048, S_T + 7, 0, S_WO), ('single', S_W2, 64, None, 0, S_WO2)], ['T', 'T', 'N'], True, U)
    lds_total = gk.lds
    for j in range(2):
        k = Kernel(f'qkvb{j}_kernel', 256, 0, 64, lds_total)
        ks.append(k)
        entry(a, k.name)
        a.e(f"""
        s_mov_b32 s{S_A0}, {WS_X[2*j+1]}
        s_mov_b32 s{S_A0+1}, {WS_Q[j]}
        s_mov_b32 s{S_A0+2}, {WS_KV[j]}
        """)
        if j < 1: a.e('s_branch L_qb_body')
    a.raw('L_qb_body:')
    a.e(f"""
    s_cmp_ge_u32 s2, 256
    s_cbranch_scc1 L_qb_end
    s_load_dwordx2 s[{S_WS}:{S_WS+1}], s[0:1], {KA['ws']}
    s_load_dwordx2 s[{S_P1}:{S_P1+1}], s[0:1], {KA['B_wq']}
    s_load_dwordx2 s[{S_P2}:{S_P2+1}], s[0:1], {KA['B_wk']}
    s_load_dwordx2 s[{S_P3}:{S_P3+1}], s[0:1], {KA['B_wv']}
    """)
    wg_map(a)
    a.e('s_waitcnt lgkmcnt(0)')
    srd(a, S_W, S_P1, 0, 2 * MB, WBIAS)
    a.e(f's_lshl_b32 s{S_T+7}, s{S_G}, 7')
    a.e(f"""
    s_lshl_b32 s{S_T}, s{S_R}, 2
    s_add_u32 s{S_T}, s{S_T}, s{S_WAVE}          ; tb
    s_lshl_b32 s{S_T+1}, s{S_T}, 16
    s_lshl_b32 s{S_T+2}, s{S_G}, 12
    s_add_u32 s{S_T+1}, s{S_T+1}, s{S_T+2}
    s_add_u32 s{S_T+1}, s{S_T+1}, s{S_A0+1}
    """)
    srd(a, S_M1, S_WS, f's{S_T+1}', 4096)
    a.e(f"""
    s_lshl_b32 s{S_T+1}, s{S_T}, 12
    s_add_u32 s{S_T+1}, s{S_T+1}, s{S_A0+2}
    """)
    srd(a, S_M3, S_WS, f's{S_T+1}', 4096)
    a.e(f"""
    s_cmp_eq_u32 s{S_G}, 0
    s_cbranch_scc1 L_qb_k
    s_cmp_eq_u32 s{S_G}, 1
    s_cbranch_scc1 L_qb_v
    """)
    T = V_XR
    SC = T + 2; VL16 = T + 56; KF = T + 68; RR = T + 40; TMP = T + 57
    def q_epilogue(RS):
        a.e(f'v_mul_f32 v{SC}, {f32hex(QSCALE)}, v{RS}')
        a.e(f'v_mul_f32 v{SC+1}, {f32hex(QSCALE)}, v{RS}')
        a.e(f'v_lshlrev_b32 v{VL16}, 4, v{V_LANE}')
        for hd in range(2):
            scale_pack_T(a, V_ACC + 16 * hd, SC, KF + 8 * hd)
            for f in range(2):
                a.e(f'buffer_store_dwordx4 {vr(KF+8*hd+4*f, 4)}, v{VL16}, s[{S_M1}:{S_M1+3}], 0 offen offset:{hd*2048 + f*1024}')
    gp.setup(a, S_A0); gp.prologue(a); gp.loop(a)
    RS = ln_epilogue(a, gp, T)
    q_epilogue(RS)
    a.e('s_endpgm')
    a.raw('L_qb_k:'); a.hist = []
    srd(a, S_W2, S_P2, 0, 65536, WBIAS)
    gk.setup(a, S_A0); gk.prologue(a); gk.loop(a)
    RS = ln_epilogue(a, gk, T)
    q_epilogue(RS)
    a.e(f'v_mov_b32 v{SC}, v{RS}')
    a.e(f'v_mov_b32 v{SC+1}, v{RS}')
    scale_pack_T(a, V_ACC + 32, SC, KF + 16)
    for f in range(2):
        a.e(f'buffer_store_dwordx4 {vr(KF+16+4*f, 4)}, v{VL16}, s[{S_M3}:{S_M3+3}], 0 offen offset:{f*1024}')
    a.e('s_endpgm')
    a.raw('L_qb_v:'); a.hist = []
    srd(a, S_W2, S_P3, 0, 65536, WBIAS)
    gv.setup(a, S_A0); gv.prologue(a); gv.loop(a)
    RS = ln_epilogue(a, gv, T)
    rstd_rows(a, RS, RR, 4096, TMP)
    q_epilogue(RS)
    a.e('s_waitcnt lgkmcnt(0)')
    acc = V_ACC + 32
    for j in range(8):
        a.e(f'v_pk_mul_f32 {vr(acc+2*j, 2)}, {vr(acc+2*j, 2)}, {vr(RR+2*j, 2)}')
    pack_tile(a, acc, KF + 16)
    for f in range(2):
        a.e(f'buffer_store_dwordx4 {vr(KF+16+4*f, 4)}, v{VL16}, s[{S_M3}:{S_M3+3}], 0 offen offset:{2048 + f*1024}')
    a.raw('L_qb_end:')
    a.e('s_endpgm')
    return ks

def gen_att(a):
    ks = []
    VL16 = 2
    CN = 16; SS = 144; PB = 176; LL = 192; ONES = 224; TT = 228
    AO = 0; AQ = 128; AKV = 192
    S_Q, S_KV, S_O = S_X, S_W, S_M1
    S_KO = S_XO; S_FB = S_WO
    REG = 4608
    lds_total = 4 * 6 * REG
    for j in range(2):
        k = Kernel(f'att{j}_kernel', 256, 256, 64, lds_total)
        ks.append(k)
        entry(a, k.name)
        a.e(f"""
        s_mov_b32 s{S_A0}, {WS_Q[j]}
        s_mov_b32 s{S_A0+1}, {WS_KV[j]}
        s_mov_b32 s{S_A0+2}, {WS_O[2*j+1]}
        """)
        if j < 1: a.e('s_branch L_att_body')
    a.raw('L_att_body:')
    a.e(f"""
    s_cmp_ge_u32 s2, 256
    s_cbranch_scc1 L_att_end
    s_load_dwordx2 s[{S_WS}:{S_WS+1}], s[0:1], {KA['ws']}
    """)
    wg_map(a)
    a.e(f"""
    v_lshlrev_b32 v{VL16}, 4, v{V_LANE}
    s_lshl_b32 s{S_T}, s{S_R}, 18            ; 4r*65536
    s_lshl_b32 s{S_T+1}, s{S_G}, 12
    s_add_u32 s{S_T+6}, s{S_T}, s{S_T+1}
    s_add_u32 s{S_T}, s{S_T+6}, s{S_A0}
    s_waitcnt lgkmcnt(0)
    """)
    srd(a, S_Q, S_WS, f's{S_T}', 3 * 65536 + 4096)
    a.e(f's_add_u32 s{S_T}, s{S_T+6}, s{S_A0+2}')
    srd(a, S_O, S_WS, f's{S_T}', 3 * 65536 + 4096)
    a.e(f"""
    s_lshl_b32 s{S_T}, s{S_WAVE}, 16
    s_add_u32 s{S_T}, s{S_T}, s{S_A0+1}
    """)
    srd(a, S_KV, S_WS, f's{S_T}', 65536)
    def kv_load(buf, part, soff, extra):
        for f in range(2):
            a.e(f'buffer_load_dwordx4 {ar(AKV+16*buf+8*part+4*f, 4)}, v{VL16}, s[{S_KV}:{S_KV+3}], {soff} offen offset:{extra + part*2048 + f*1024}')
    kv_load(0, 0, '0', 0)
    for j in range(8):
        d = S_A0 + 4 + j if j < 2 else S_T + 2
        a.e(f"""
        s_lshl_b32 s{S_T}, s{S_WAVE}, 1
        s_add_u32 s{S_T}, s{S_T}, {j}
        s_and_b32 s{S_T+1}, s{S_T}, 3
        s_lshl_b32 s{S_T+1}, s{S_T+1}, 16
        s_bfe_u32 s{S_T}, s{S_T}, 0x10002
        s_lshl_b32 s{S_T}, s{S_T}, 11
        s_add_u32 s{d}, s{S_T}, s{S_T+1}
        """)
        for f in range(2):
            a.e(f'buffer_load_dwordx4 {ar(AQ+8*j+4*f, 4)}, v{VL16}, s[{S_Q}:{S_Q+3}], s{d} offen offset:{1024*f}')
    kv_load(0, 1, '0', 0)
    a.e(f's_mov_b32 s{S_KO}, 4096')
    kv_load(1, 0, f's{S_KO}', 0)
    kv_load(1, 1, f's{S_KO}', 0)
    a.e(f"""
    v_bfe_u32 v{TT}, v{V_LANE}, 2, 1
    v_bfe_u32 v{TT+1}, v{V_LANE}, 4, 1
    v_cmp_eq_u32 vcc, v{TT}, v{TT+1}
    v_mov_b32 v{TT+2}, 0x3f803f80
    v_cndmask_b32 v{ONES}, 0, v{TT+2}, vcc
    v_mov_b32 v{ONES+1}, v{ONES}
    v_mov_b32 v{ONES+2}, v{ONES}
    v_mov_b32 v{ONES+3}, v{ONES}
    s_mov_b32 s{S_FB}, 0
    s_waitcnt vmcnt(6)
    """)
    def qk(dst, buf, j, c):
        a.e(f'v_mfma_f32_32x32x16_bf16 {vr(dst, 16)}, {ar(AKV+16*buf, 4)}, {ar(AQ+8*j, 4)}, {c}')
        a.e(f'v_mfma_f32_32x32x16_bf16 {vr(dst, 16)}, {ar(AKV+16*buf+4, 4)}, {ar(AQ+8*j+4, 4)}, {vr(dst, 16)}')
    def maxtree(dst, src, first):
        if first:
            a.e(f'v_max3_f32 v{dst}, v{src}, v{src+1}, v{src+2}')
            for i in range(3, 15, 2): a.e(f'v_max3_f32 v{dst}, v{dst}, v{src+i}, v{src+i+1}')
            a.e(f'v_max_f32 v{dst}, v{dst}, v{src+15}')
        else:
            for i in range(0, 16, 2): a.e(f'v_max3_f32 v{dst}, v{dst}, v{src+i}, v{src+i+1}')
    MX = TT
    for j in range(8): qk(CN + 16 * j, 0, j, '0')
    for j in range(8): maxtree(MX + j, CN + 16 * j, True)
    a.raw('L_att_setmax:')
    a.flush_hazards()
    for j in range(8):
        xhalf(a, 'v_max_f32', MX + j, MX + j, TT + 8)
        for i in range(16): a.e(f'v_sub_f32 v{CN+16*j+i}, 0, v{MX+j}')
    for i in range(128): a.e(f'v_accvgpr_write_b32 a{AO+i}, 0')
    for i in range(32): a.e(f'v_mov_b32 v{LL+i}, 0')
    for i in range(8): a.e(f'v_mov_b32 v{PB+8+i}, 0')
    a.e(f's_mov_b32 s{S_KO}, 4096')
    a.e(f's_mov_b32 s{S_CNT}, 8')
    a.e('s_waitcnt vmcnt(0)')
    qk(SS, 0, 0, vr(CN, 16))
    beg = a.loop_begin('L_att_loop')
    for t in range(2):
        for qb in range(8):
            n = qb
            cur = SS + 16 * (n & 1); nxt = SS + 16 * ((n + 1) & 1)
            pc = PB + 8 * (n & 1); pp = PB + 8 * ((n + 1) & 1)
            jn = (qb + 1) & 7; bn = t if qb < 7 else t ^ 1
            jp = (qb - 1) & 7; bp = t if qb > 0 else t ^ 1
            e = lambda i: a.e(f'v_exp_f32 v{cur+i}, v{cur+i}')
            c = lambda i: a.e(f'v_cvt_pk_bf16_f32 v{pc+i}, v{cur+2*i}, v{cur+2*i+1}')
            if qb == 7:
                a.e('s_waitcnt vmcnt(2)')
            a.e(f'v_mfma_f32_32x32x16_bf16 {vr(nxt, 16)}, {ar(AKV+16*bn, 4)}, {ar(AQ+8*jn, 4)}, {vr(CN+16*jn, 16)}')
            if qb == 7:
                kv_load(t, 0, f's{S_KO}', 0)
            e(0); e(1); e(2)
            a.e(f'v_mfma_f32_32x32x16_bf16 {vr(nxt, 16)}, {ar(AKV+16*bn+4, 4)}, {ar(AQ+8*jn+4, 4)}, {vr(nxt, 16)}')
            e(3); c(0); e(4); e(5)
            if qb == 1:
                a.e('s_waitcnt vmcnt(2)')
            a.e(f'v_mfma_f32_32x32x16_bf16 {ar(AO+16*jp, 16)}, {ar(AKV+16*bp+8, 4)}, {vr(pp, 4)}, {ar(AO+16*jp, 16)}')
            if qb == 1:
                kv_load(t ^ 1, 1, f's{S_KO}', 0)
                a.e(f's_add_u32 s{S_KO}, s{S_KO}, 4096')
            c(1); e(6); e(7); c(2)
            a.e(f'v_mfma_f32_32x32x16_bf16 {ar(AO+16*jp, 16)}, {ar(AKV+16*bp+12, 4)}, {vr(pp+4, 4)}, {ar(AO+16*jp, 16)}')
            e(8); c(3); e(9); e(10)
            a.e(f'v_mfma_f32_16x16x32_bf16 {vr(LL+4*jp, 4)}, {vr(ONES, 4)}, {vr(pp, 4)}, {vr(LL+4*jp, 4)}')
            e(11); c(4); e(12)
            a.e(f'v_mfma_f32_16x16x32_bf16 {vr(LL+4*jp, 4)}, {vr(ONES, 4)}, {vr(pp+4, 4)}, {vr(LL+4*jp, 4)}')
            e(13); c(5); e(14); e(15); c(6); c(7)
    a.e(f's_sub_u32 s{S_CNT}, s{S_CNT}, 1')
    a.e(f's_cmp_lg_u32 s{S_CNT}, 0')
    a.loop_end(beg, 's_cbranch_scc1 L_att_loop')
    pp = PB + 8
    a.e(f'v_mfma_f32_32x32x16_bf16 {ar(AO+16*7, 16)}, {ar(AKV+16+8, 4)}, {vr(pp, 4)}, {ar(AO+16*7, 16)}')
    a.e(f'v_mfma_f32_32x32x16_bf16 {ar(AO+16*7, 16)}, {ar(AKV+16+12, 4)}, {vr(pp+4, 4)}, {ar(AO+16*7, 16)}')
    a.e(f'v_mfma_f32_16x16x32_bf16 {vr(LL+28, 4)}, {vr(ONES, 4)}, {vr(pp, 4)}, {vr(LL+28, 4)}')
    a.e(f'v_mfma_f32_16x16x32_bf16 {vr(LL+28, 4)}, {vr(ONES, 4)}, {vr(pp+4, 4)}, {vr(LL+28, 4)}')
    a.e(f'v_add_f32 v{TT}, v{LL}, v{LL+4}')
    for j in range(2, 8): a.e(f'v_add_f32 v{TT}, v{TT}, v{LL+4*j}')
    a.e(f"""
    v_mov_b32 v{TT+1}, {f32hex(2.0**64)}
    v_cmp_nle_f32 vcc, v{TT}, v{TT+1}
    s_cmp_eq_u64 vcc, 0
    s_cbranch_scc1 L_att_combine
    s_cmp_lg_u32 s{S_FB}, 0
    s_cbranch_scc1 L_att_combine
    s_mov_b32 s{S_FB}, 1
    s_mov_b32 s{S_KO}, 0
    s_mov_b32 s{S_CNT}, 16
    s_waitcnt vmcnt(0)
    """)
    for j in range(8): a.e(f'v_sub_f32 v{MX+j}, 0, v{CN+16*j}')
    fb = a.loop_begin('L_att_maxloop')
    kv_load(0, 0, f's{S_KO}', 0)
    a.e(f's_add_u32 s{S_KO}, s{S_KO}, 4096')
    a.e('s_waitcnt vmcnt(0)')
    for j in range(8): qk(CN + 16 * j, 0, j, '0')
    for j in range(8): maxtree(MX + j, CN + 16 * j, False)
    a.e(f's_sub_u32 s{S_CNT}, s{S_CNT}, 1')
    a.e(f's_cmp_lg_u32 s{S_CNT}, 0')
    a.loop_end(fb, 's_cbranch_scc1 L_att_maxloop')
    kv_load(0, 0, '0', 0); kv_load(0, 1, '0', 0)
    a.e(f's_mov_b32 s{S_KO}, 4096')
    kv_load(1, 0, f's{S_KO}', 0); kv_load(1, 1, f's{S_KO}', 0)
    a.e('s_branch L_att_setmax')
    a.raw('L_att_combine:')
    a.flush_hazards()
    AD = TT
    for sl in range(3):
        a.e(f"""
        s_add_u32 s{S_T}, s{S_WAVE}, {sl+1}
        s_and_b32 s{S_T}, s{S_T}, 3
        s_mul_i32 s{S_T}, s{S_T}, {6*REG}
        s_add_u32 s{S_T}, s{S_T}, {sl*2*REG}
        v_add_u32 v{AD+sl}, s{S_T}, v{VL16}
        v_lshl_add_u32 v{AD+3+sl}, v{V_LANE}, 3, s{S_T}
        """)
    for j in range(2, 8):
        sl = (j >> 1) - 1; sub = j & 1
        for q in range(4):
            a.e(f'ds_write_b128 v{AD+sl}, {ar(AO+16*j+4*q, 4)} offset:{sub*REG + q*1024}')
        a.e(f'v_mov_b32 v{LL+4*j+1}, v{CN+16*j}')
        a.e(f'ds_write_b64 v{AD+3+sl}, {vr(LL+4*j, 2)} offset:{sub*REG + 4096}')
    a.e(f"""
    s_mul_i32 s{S_T}, s{S_WAVE}, {6*REG}
    v_add_u32 v{AD}, s{S_T}, v{VL16}
    v_lshl_add_u32 v{AD+1}, v{V_LANE}, 3, s{S_T}
    s_waitcnt lgkmcnt(0)
    s_barrier
    """)
    RO = CN + 32
    RL = SS
    OW = CN + 96
    F = SS + 8
    for j in range(2):
        for sl in range(3):
            a.e(f'ds_read_b64 {vr(RL+2*sl, 2)}, v{AD+1} offset:{(2*sl+j)*REG + 4096}')
        for sl in range(3):
            for q in range(4):
                a.e(f'ds_read_b128 {vr(RO+16*sl+4*q, 4)}, v{AD} offset:{(2*sl+j)*REG + q*1024}')
        for i in range(16): a.e(f'v_accvgpr_read_b32 v{OW+i}, a{AO+16*j+i}')
        nm0 = CN + 16 * j; l0 = LL + 4 * j
        a.e(f"""
        s_waitcnt lgkmcnt(12)
        v_min3_f32 v{F+8}, v{nm0}, v{RL+1}, v{RL+3}
        v_min_f32 v{F+8}, v{F+8}, v{RL+5}
        v_sub_f32 v{F}, v{F+8}, v{nm0}
        v_sub_f32 v{F+2}, v{F+8}, v{RL+1}
        v_sub_f32 v{F+4}, v{F+8}, v{RL+3}
        v_sub_f32 v{F+6}, v{F+8}, v{RL+5}
        v_exp_f32 v{F}, v{F}
        v_exp_f32 v{F+2}, v{F+2}
        v_exp_f32 v{F+4}, v{F+4}
        v_exp_f32 v{F+6}, v{F+6}
        v_mul_f32 v{F+8}, v{F}, v{l0}
        v_fma_f32 v{F+8}, v{F+2}, v{RL}, v{F+8}
        v_fma_f32 v{F+8}, v{F+4}, v{RL+2}, v{F+8}
        v_fma_f32 v{F+8}, v{F+6}, v{RL+4}, v{F+8}
        v_rcp_f32 v{F+8}, v{F+8}
        v_mul_f32 v{F}, v{F}, v{F+8}
        v_mul_f32 v{F+2}, v{F+2}, v{F+8}
        v_mul_f32 v{F+4}, v{F+4}, v{F+8}
        v_mul_f32 v{F+6}, v{F+6}, v{F+8}
        """)
        for i in range(8):
            a.e(f'v_pk_mul_f32 {vr(OW+2*i, 2)}, {vr(OW+2*i, 2)}, {vr(F, 2)} op_sel_hi:[1,0]')
        for sl in range(3):
            a.e(f's_waitcnt lgkmcnt({8-4*sl})')
            for i in range(8):
                a.e(f'v_pk_fma_f32 {vr(OW+2*i, 2)}, {vr(RO+16*sl+2*i, 2)}, {vr(F+2+2*sl, 2)}, {vr(OW+2*i, 2)} op_sel_hi:[1,0,1]')
        OP = PB + 8 * j
        pack_tile(a, OW, OP)
        for f in range(2):
            a.e(f'buffer_store_dwordx4 {vr(OP+4*f, 4)}, v{VL16}, s[{S_O}:{S_O+3}], s{S_A0+4+j} offen offset:{1024*f}')
    a.raw('L_att_end:')
    a.e('s_endpgm')
    return ks

def build(U=4, extra_trivial=0):
    a = Asm()
    kp = gen_prep(a)
    ko = gen_out(a, U)
    kk = gen_kva(a, U)
    kq = gen_qa(a)
    kb = gen_qkvb(a, U)
    kt = gen_att(a)
    order = [kp, kk[0], kq[0], ko[0], kb[0], kt[0], ko[1], kk[1], kq[1], ko[2], kb[1], kt[1], ko[3]]
    order = [kp] * extra_trivial + order
    allk = [kp] + ko + kk + kq + kb + kt
    head = open('cdna_kernels/' + NAME + '.s.ref').read().split('; Override launch geometry')[0]
    s = head
    for k in order:
        s += f'; @launch kernel={k.name} grid=({k.grid},1,1) block=({k.block},1,1) lds={k.lds}\n'
    s += '.amdgcn_target "amdgcn-amd-amdhsa--gfx950"\n.text\n'
    s += a.text()
    s += '.section .rodata,"a"\n'
    for k in allk: s += k.desc()
    return s

if __name__ == '__main__':
    out = sys.argv[1] if len(sys.argv) > 1 else 'cdna_kernels/' + NAME + '.s'
    kw = {}
    for x in sys.argv[2:]:
        k, v = x.split('='); kw[k] = int(v)
    open(out, 'w').write(build(**kw))
```
